```python
import torch

def _softmax(x, axis=-1):
    return torch.softmax(x, dim=axis)
def _gelu(x):
    return torch.nn.functional.gelu(x, approximate="tanh")
def _silu(x):
    return torch.nn.functional.silu(x)
def _sigmoid(x):
    return torch.sigmoid(x)
def _layernorm(x, axis=-1, eps=1e-5):
    m = x.mean(dim=axis, keepdim=True)
    v = x.var(dim=axis, keepdim=True, unbiased=False)
    return (x - m) / torch.sqrt(v + eps)
def _scatter_add(tgt, idx, src, axis=0):
    return tgt.clone().index_add_(axis, idx, src)
def _segment_sum(src, seg, n):
    out = torch.zeros((n,) + src.shape[1:], dtype=src.dtype)
    return out.index_add_(0, seg, src)
def _pad(x, pw):
    flat = tuple(v for pair in reversed(pw) for v in pair)
    return torch.nn.functional.pad(x, flat)

kernel_name = 'interleave_layers__linear_attn_block__sliding_block__prompt'

def setup_inputs():

    _w = (lambda a: (lambda t: t.to(torch.bfloat16) if t.is_floating_point() else t)(torch.as_tensor(a)))
    def _A_setup():
        B, S, D = 1, 2048, 576
        return {
            "x": _w((lambda *s: torch.randn(*s, dtype=torch.bfloat16) * 0.05)(B, S, D)),
            "wqkv": _w((lambda *s: torch.randn(*s, dtype=torch.bfloat16) * 0.05)(D, 3 * D)),
            "wo": _w((lambda *s: torch.randn(*s, dtype=torch.bfloat16) * 0.05)(D, D)),
        }
    _A_in = _A_setup()

    def _B_setup():
        B, S, D = 1, 2048, 576
        return {
            "x": _w((lambda *s: torch.randn(*s, dtype=torch.bfloat16) * 0.05)(B, S, D)),
            "wqkv": _w((lambda *s: torch.randn(*s, dtype=torch.bfloat16) * 0.1)(D, 3 * D)),
            "wo": _w((lambda *s: torch.randn(*s, dtype=torch.bfloat16) * 0.05)(D, D)),
        }
    _B_in = _B_setup()

    return {
        "A_x": _A_in["x"],
        "A_wqkv": _A_in["wqkv"],
        "A_wo": _A_in["wo"],
        "B_x": _B_in["x"],
        "B_wqkv": _B_in["wqkv"],
        "B_wo": _B_in["wo"],
    }

def reference(A_x, A_wqkv, A_wo, B_x, B_wqkv, B_wo):
    def _A_ref(x, wqkv, wo):
        B, S, D = x.shape
        H = 32; Dh = D // H
        qkv = (lambda x, *d: x.permute(*d))((x @ wqkv).reshape(B, S, 3, H, Dh), 2, 0, 3, 1, 4)
        q, k, v = qkv[0], qkv[1], qkv[2]
        phi = lambda t: torch.where(t > 0, t + 1, torch.exp(t)) + 1e-6
        pq, pk = phi(q), phi(k)
        kv = torch.einsum("bhsd,bhse->bhde", pk, v)
        z = torch.einsum("bhsd->bhd", pk)
        num = torch.einsum("bhqd,bhde->bhqe", pq, kv)
        den = torch.einsum("bhqd,bhd->bhq", pq, z)[..., None] + 1e-6
        o = num / den
        return (lambda x, *d: x.permute(*d))(o, 0, 2, 1, 3).reshape(B, S, D) @ wo

    def _B_ref(x, wqkv, wo):
        B, S, D = x.shape
        H = 32; Dh = D // H; W = 256
        qkv = (lambda x, *d: x.permute(*d))((x @ wqkv).reshape(B, S, 3, H, Dh), 2, 0, 3, 1, 4)
        q, k, v = qkv[0], qkv[1], qkv[2]
        scores = torch.einsum("bhqd,bhkd->bhqk", q, k) * (Dh ** -0.5)
        idx = torch.arange(S)
        mask = (idx[:, None] - idx[None, :] >= 0) & (idx[:, None] - idx[None, :] < W)
        scores = torch.where(mask[None, None], scores, -1e9)
        p = _softmax(scores, axis=-1)
        o = torch.einsum("bhqk,bhkd->bhqd", p, v)
        return (lambda x, *d: x.permute(*d))(o, 0, 2, 1, 3).reshape(B, S, D) @ wo

    x = A_x
    x = x + _A_ref(_layernorm(x, axis=-1), A_wqkv, A_wo)
    x = x + _B_ref(_layernorm(x, axis=-1), B_wqkv, B_wo)
    x = x + _A_ref(_layernorm(x, axis=-1), A_wqkv, A_wo)
    x = x + _B_ref(_layernorm(x, axis=-1), B_wqkv, B_wo)
    return x
```

```python
import re, copy

REG = re.compile(r'^(-|abs\()?([vas])(\d+)\)?$')
RNG = re.compile(r'^(-)?([vas])\[(\d+):(\d+)\]$')
TRANS = ('v_exp_', 'v_log_', 'v_rcp_', 'v_rsq_', 'v_sqrt_', 'v_sin_', 'v_cos_')

def regs_of(op):
    op = op.strip()
    m = REG.match(op)
    if m: return {(m.group(2), int(m.group(3)))}
    m = RNG.match(op)
    if m: return {(m.group(2), i) for i in range(int(m.group(3)), int(m.group(4)) + 1)}
    if op == 'vcc': return {('s', 'vcc_lo'), ('s', 'vcc_hi')}
    if op in ('vcc_lo', 'vcc_hi', 'exec_lo', 'exec_hi', 'm0'): return {('s', op)}
    if op == 'exec': return {('s', 'exec_lo'), ('s', 'exec_hi')}
    return set()

class Ins:
    def __init__(self, text, tag=None):
        self.text = text; self.tag = tag
        t = text.split(';')[0].strip()
        self.label = t.endswith(':')
        parts = t.split(None, 1)
        self.op = parts[0] if parts else ''
        rest = parts[1] if len(parts) > 1 else ''
        ops = []; depth = 0; cur = ''
        for ch in rest:
            if ch in '([': depth += 1
            if ch in ')]': depth -= 1
            if ch == ',' and depth == 0: ops.append(cur.strip()); cur = ''
            else: cur += ch
        if cur.strip(): ops.append(cur.strip())
        self.mods = []
        if ops:
            last = ops[-1].split()
            ops[-1] = last[0]; self.mods = last[1:]
        self.ops = ops
        op = self.op
        R = [regs_of(o) for o in ops]
        U = lambda xs: set().union(*xs) if xs else set()
        self.rd = set(); self.wr = set(); self.kind = 'other'
        self.srcC = set(); self.srcAB = set(); self.passes = 0; self.data = set()
        if self.label or op.startswith('.') or op == '':
            self.kind = 'none'
        elif op.startswith('v_mfma'):
            self.kind = 'mfma'; self.wr = R[0]; self.srcAB = R[1] | R[2]; self.srcC = R[3]; self.rd = self.srcAB | self.srcC
            self.passes = 8 if '32x32' in op else 4
        elif op.startswith('v_'):
            self.kind = 'valu'
            if op.startswith('v_permlane') and 'swap' in op:
                self.wr = R[0] | R[1]; self.rd = R[0] | R[1]
            elif op.startswith(('v_add_co', 'v_sub_co', 'v_addc_co', 'v_subb_co')):
                self.wr = R[0] | R[1]; self.rd = U(R[2:])
            elif op == 'v_nop': pass
            else:
                self.wr = R[0]; self.rd = U(R[1:])
                if op.startswith(('v_fmac', 'v_dot2c', 'v_writelane', 'v_pk_fmac')): self.rd |= R[0]
                if op.startswith('v_cndmask') and len(ops) == 3: self.rd |= regs_of('vcc')
        elif op.startswith('ds_'):
            self.kind = 'ds'
            if op.startswith(('ds_read', 'ds_bpermute', 'ds_permute', 'ds_swizzle')): self.wr = R[0]; self.rd = U(R[1:])
            else: self.rd = U(R)
        elif op.startswith(('buffer_', 'global_')):
            self.kind = 'vmem'
            if 'lds' in self.mods or '_lds_' in op: self.rd = U(R) | {('s', 'm0')}; self.dma = True
            elif '_load' in op: self.wr = R[0]; self.rd = U(R[1:])
            else:
                self.rd = U(R)
                if op.endswith(('x3', 'x4')): self.data = R[0] if op.startswith('buffer') else R[1]
        elif op.startswith(('s_load', 's_memtime', 's_memrealtime')):
            self.kind = 'smem'; self.wr = R[0]; self.rd = U(R[1:])
        elif op.startswith('s_'):
            self.kind = 'salu'
            if op.startswith(('s_cmp', 's_cbranch', 's_branch', 's_waitcnt', 's_barrier', 's_nop', 's_setprio', 's_sleep', 's_endpgm', 's_bitcmp', 's_setpc')):
                self.rd = U(R)
                if 'vcc' in op: self.rd |= regs_of('vcc')
            else:
                self.wr = R[0]; self.rd = U(R[1:])
                if 'saveexec' in op: self.wr |= regs_of('exec')
        self.trans = op.startswith(TRANS)
        self.dl = op.startswith('v_dot')
        self.states = (int(ops[0], 0) + 1) if op == 's_nop' else (0 if self.kind == 'none' else 1)

def need_states(p, c):
    n = 0
    vw = {r for r in p.wr if r[0] in 'va'}
    sw = {r for r in p.wr if r[0] == 's'}
    if p.kind == 'valu':
        if c.kind == 'mfma' and vw & c.rd: n = max(n, 3 if p.dl else 2)
        if c.kind == 'valu':
            if c.op.startswith('v_permlane') and vw & c.rd: n = max(n, 2)
            if any(m.startswith(('row_', 'quad_perm', 'wave_')) for m in c.mods) and vw & c.rd: n = max(n, 2)
            if c.op.startswith(('v_readfirstlane', 'v_readlane')) and vw & c.rd: n = max(n, 1)
            if p.trans and not c.trans and vw & c.rd: n = max(n, 1)
            if p.trans and c.trans and vw & c.rd: n = max(n, 1)
            if sw & c.rd: n = max(n, 4 if c.op.startswith(('v_readlane', 'v_writelane')) else 2)
            if any(m.startswith(('op_sel', 'dst_sel')) for m in p.mods) and vw & (c.rd | c.wr): n = max(n, 1)
        if p.dl and vw & (c.rd | c.wr):
            if c.op == p.op and not (vw & (regs_of(c.ops[1]) | regs_of(c.ops[2]))): pass
            else: n = max(n, 3)
        if c.kind == 'vmem' and sw & c.rd: n = max(n, 5)
        if p.trans and c.kind in ('ds', 'vmem') and vw & c.rd: n = max(n, 1)
    if p.kind == 'mfma':
        big = 12 if p.passes == 8 else 8
        if c.kind == 'mfma':
            if vw & c.srcAB: n = max(n, big)
            if vw & c.srcC or vw & c.wr:
                if not (c.srcC == p.wr and c.passes == p.passes): n = max(n, big - 2)
        elif c.kind in ('valu', 'ds', 'vmem'):
            if vw & (c.rd | c.wr): n = max(n, big)
            if c.kind == 'valu' and p.srcC & c.wr: n = max(n, 7 if p.passes == 8 else 3)
            if c.kind in ('ds', 'vmem') and p.srcC & c.wr: n = max(n, 7 if p.passes == 8 else 3)
    if p.kind == 'salu' and ('s', 'm0') in p.wr and c.kind == 'vmem' and ('s', 'm0') in c.rd: n = max(n, 1)
    if p.kind == 'vmem' and p.data and p.data & c.wr: n = max(n, 2)
    return n

class Prog:
    def __init__(self):
        self.out = []
        self.hist = []
        self.vm = []
        self.lg = []
        self.nlab = 0
        self.opt = False
        self.nnop = 0
    def label(self, base='L'):
        self.nlab += 1
        return f'{base}_{self.nlab}'
    def _emit(self, ins):
        self.out.append(ins.text if (ins.label or ins.kind == 'none') else '    ' + ins.text)
        if ins.kind != 'none':
            self.hist.append(ins)
            if len(self.hist) > 24: self.hist.pop(0)
    def _wait(self, vmn=None, lgn=None, raw=False):
        parts = []
        if vmn is not None:
            keep = self.vm[len(self.vm) - vmn:] if 0 < vmn < len(self.vm) else ([] if vmn == 0 else self.vm)
            enc = vmn if raw else sum(1 for x in keep if not x[2])
            assert not (raw and vmn and any(x[2] for x in self.vm)), 'raw counted wait over optional ops'
            if enc > 63:
                enc = 63
            parts.append(f'vmcnt({enc})')
            self.vm = [] if enc == 0 else keep
        if lgn is not None:
            lgn = min(lgn, 15)
            if any(x[2] for x in self.lg): lgn = 0
            parts.append(f'lgkmcnt({lgn})')
            self.lg = self.lg[len(self.lg) - lgn:] if lgn < len(self.lg) else self.lg
            if lgn == 0: self.lg = []
        self._emit(Ins('s_waitcnt ' + ' '.join(parts)))
    def _need(self, regs):
        vmn = lgn = None
        for i in range(len(self.vm) - 1, -1, -1):
            if self.vm[i][1] & regs: vmn = len(self.vm) - 1 - i; break
        for i in range(len(self.lg) - 1, -1, -1):
            if self.lg[i][1] & regs: lgn = len(self.lg) - 1 - i; break
        if vmn is not None or lgn is not None: self._wait(vmn, lgn)
    def need(self, *ops):
        s = set()
        for o in ops: s |= regs_of(o)
        self._need(s)
    def wait_vm(self, tag):
        for i in range(len(self.vm) - 1, -1, -1):
            if self.vm[i][0] == tag:
                self._wait(vmn=len(self.vm) - 1 - i); return
    def wait_all(self, vm=True, lg=True):
        self._wait(0 if vm else None, 0 if lg else None)
    def one(self, text, tag=None):
        if callable(text): return text()
        if isinstance(text, tuple): return self.one(text[0], text[1])
        ins = Ins(text, tag)
        if ins.op == 's_waitcnt':
            m = re.search(r'vmcnt\((\d+)\)', text); n = re.search(r'lgkmcnt\((\d+)\)', text)
            self._wait(int(m.group(1)) if m else None, int(n.group(1)) if n else None, raw=True); return
        if ins.kind != 'none':
            self._need(ins.rd | ins.wr)
            need = 0; dist = 0
            for p in reversed(self.hist):
                k = need_states(p, ins) - dist
                need = max(need, k)
                dist += p.states
                if dist >= 20: break
            while need > 0:
                k = min(need, 16); self._emit(Ins(f's_nop {k-1}')); need -= k; self.nnop += k
        self._emit(ins)
        if ins.kind == 'vmem': self.vm.append((tag, set(ins.wr), self.opt))
        if ins.kind == 'ds': self.lg.append((tag, set(ins.wr), False))
        if ins.kind == 'smem': self.lg.append((tag, set(ins.wr), True))
    def __call__(self, text, tag=None):
        if isinstance(text, list):
            for t in text: self.one(t, tag)
        elif isinstance(text, str):
            for line in text.split('\n'):
                line = line.strip()
                if line: self.one(line, tag)
        else: self.one(text, tag)
    def settle(self):
        need = 0; dist = 0
        for p in reversed(self.hist):
            k = 0
            if p.kind == 'mfma': k = 12 if p.passes == 8 else 8
            elif p.kind == 'valu': k = 5 if any(r[0] == 's' for r in p.wr) else 3
            elif p.kind == 'vmem' and p.data: k = 2
            elif p.kind == 'salu' and ('s', 'm0') in p.wr: k = 1
            need = max(need, k - dist); dist += p.states
        if need > 0: self._emit(Ins(f's_nop {need-1}'))
    def snap(self): return (list(self.hist), list(self.vm), list(self.lg))
    def restore(self, s): self.hist, self.vm, self.lg = list(s[0]), list(s[1]), list(s[2])
    def no_pending_regs(self):
        assert not any(x[1] for x in self.vm), self.vm
        assert not any(x[1] for x in self.lg), self.lg
    def text(self): return '\n'.join(self.out) + '\n'

def interleave(main, side, start=0, end=None):
    end = len(main) if end is None else end
    n = end - start
    out = []; k = 0
    for i, m in enumerate(main):
        out.append(m)
        if start <= i < end:
            tgt = (len(side) * (i - start + 1) + n - 1) // n
            while k < tgt: out.append(side[k]); k += 1
    out += side[k:]
    return out

def v(i, n=1): return f'v{i}' if n == 1 else f'v[{i}:{i+n-1}]'
def a(i, n=1): return f'a{i}' if n == 1 else f'a[{i}:{i+n-1}]'
def s(i, n=1): return f's{i}' if n == 1 else f's[{i}:{i+n-1}]'
```

```python
import sys, struct, math
from asmlib import *

NAME = 'interleave_layers__linear_attn_block__sliding_block__prompt'
DIAG = '--diag' in sys.argv
FORCE_SLOW = '--slow' in sys.argv
FORCE_FB = '--fb' in sys.argv

def f2u(x): return struct.unpack('<I', struct.pack('<f', x))[0]
def H(x): return hex(x & 0xffffffff)
LOG2E = math.log2(math.e); LN2 = math.log(2.0)

ROW = 160
P2, P1, RR, MISC = 0, 216 * ROW, 576 * ROW, 992 * ROW
REC = RR + 32 * ROW
SPARE1 = P1 + 288 * ROW
SPARE2 = RR + 360 * ROW
CS = {'A': MISC, 'B': MISC + 512}
STS = MISC + 1024
KVT = MISC + 2048
PART1 = {'A': RR, 'B': P1}
QIMG = {'A': P1, 'B': RR}
KVS = [SPARE1, SPARE1 + 3792, SPARE1 + 2 * 3792, SPARE2]
FX, FO = 0, 8192
KVP, KVP_IT = 0x10000, 0x100000
HALO, HALO_IT = 0x400000, 0x600000
XBUF, OBUF, BUF_L = 0x1000000, 0x2000000, 0x280000
XRT, ORT = 19456, 18432
STAMP = 0x3000000
WS_SIZE = 0x4000000
OOB = 0x10000000
sX, sWA, sWOA, sWB, sWOB, sOUT, sDBG, sWS = 4, 8, 12, 16, 20, 24, 28, 32
s_r, s_c, s_w, s_cb, s_hf, s_fast, s_it, s_spin, s_lay = range(36, 45)
s_xrd, s_xwr, s_owr, s_ord, s_fxw, s_fow, s_kvw, s_kvr, s_hw, s_xrow, s_rerun = range(45, 56)
T0 = 56
s_mlo = 70
s_mc12 = 72
s_ones = 74
s_st = 76
SRD = lambda b: s(b, 4)
vLane, vL16, vDKV, vDQ, vDO, pMain, pL, pSh, pLSh, pO, pOSh, vG0 = range(0, 12)
vXT4, vXST, vOM, vOL, vFXp, vFOp, vRV, vRL, vXO, vKVP, vStamp, vZero = range(12, 24)
vT = 24
XACC = 44

P = Prog()
nstamp = [0]
def stamp(name):
    if not DIAG: return
    i = nstamp[0]; nstamp[0] += 1
    STN.append(name)
    P(f's_memrealtime {s(s_st,2)}')
    P('s_waitcnt lgkmcnt(0)')
    P(f's_mul_i32 {s(s_st+1)}, {s(s_it)}, 28')
    P(f's_add_u32 m0, {s(s_st+1)}, {i}')
    P(f'v_writelane_b32 {v(vStamp)}, {s(s_st)}, m0')
STN = []

def alt(fn):
    l1, l2 = P.label('slow'), P.label('join')
    P(f's_cmp_eq_u32 {s(s_fast)}, 0')
    P(f's_cbranch_scc1 {l1}')
    sn = P.snap()
    fn('')
    n1 = len(P.vm)
    P(f'{l2}:')
    after = P.snap()
    saved = P.out; P.out = []
    P.restore(sn)
    P(f'{l1}:')
    fn(' sc1')
    assert len(P.vm) == n1
    P.settle()
    P(f's_branch {l2}')
    OUTL.extend(P.out); P.out = saved
    P.restore(after)
OUTL = []

def skip_if(cmp_text, fn, scc=1):
    l = P.label('skip')
    P.settle()
    P(cmp_text)
    P(f's_cbranch_scc{scc} {l}')
    old = P.opt; P.opt = True
    sn = P.snap()
    fn()
    P.opt = old
    P.wait_all(vm=False)
    P.settle()
    newvm = [x for x in P.vm if x not in sn[1]]
    P.vm = list(sn[1]) + newvm
    P.lg = list(sn[2])
    P(f'{l}:')

def spin_pre():
    P(f's_sub_u32 {s(s_spin)}, {s(s_spin)}, 1')
    P(f's_cselect_b64 {s(T0+12,2)}, 0, -1')
    P(f's_max_i32 {s(s_spin)}, {s(s_spin)}, 0')
def spin_post(l):
    P(f's_and_b64 vcc, vcc, {s(T0+12,2)}')
    P(f's_cbranch_scc1 {l}')

def poll(vaddr):
    l = P.label('poll')
    P.settle()
    P(f'{l}:')
    P(f'buffer_load_dword {v(vT)}, {v(vaddr)}, {SRD(sWS)}, 0 offen sc1')
    spin_pre()
    P('s_waitcnt vmcnt(0)')
    P(f'v_cmp_gt_u32 vcc, {s(s_lay)}, {v(vT)}')
    spin_post(l)

def dma(srd, vpat, n, row0, pitch, lds, k0=0, k1=None, tag='dma'):
    k1 = n if k1 is None else k1
    so, sm = T0 + 10, T0 + 11
    L = [f's_mul_i32 {s(so)}, {s(s_w)}, {6*n*pitch}',
         f's_mul_i32 {s(sm)}, {s(s_w)}, {6*n*ROW}',
         f's_add_u32 {s(so)}, {s(so)}, {(row0+6*k0)*pitch}',
         's_mov_b32 exec_hi, 0x0fffffff']
    for k in range(k0, k1):
        kk = (k - k0) % 5
        if kk == 0:
            L.append(f's_add_u32 m0, {s(sm)}, {lds + 960*k}')
            if k > k0: L.append(f's_add_u32 {s(so)}, {s(so)}, {6*pitch + 4*960}')
        else:
            L.append(f's_add_u32 {s(so)}, {s(so)}, {6*pitch - 960}')
        L.append((f'buffer_load_dwordx4 {v(vpat)}, {SRD(srd)}, {s(so)} offen' + (f' offset:{960*kk}' if kk else '') + ' lds', tag))
    L.append('s_mov_b32 exec_hi, -1')
    return L
WS_ = {'A': sWA, 'B': sWB}; WO_ = {'A': sWOA, 'B': sWOB}
def dma_p1(t, k0=0, k1=None): return dma(WS_[t], vDKV, 15, 0, 3456, PART1[t], k0, k1)
def dma_p2(t): return dma(WS_[t], vDKV, 9, 360, 3456, P2)
def dma_q(t): return dma(WS_[t], vDQ, 12, 0, 3456, QIMG[t])
def dma_wo(t): return dma(WO_[t], vDO, 15, 0, 1152, PART1[t]) + dma(WO_[t], vDO, 9, 360, 1152, P2)

KORD = list(range(10)) + [16] + list(range(10, 16)) + [17]

def img_addrs(dst, pat, patsh, base):
    return [f'v_add_u32 {v(dst)}, {base}, {v(pat)}',
            f'v_mov_b32 {v(dst+1)}, {v(pat)}',
            f'v_add_u32 {v(dst+2)}, {base}, {v(patsh)}',
            f'v_and_b32 {v(dst+3)}, {base + 360*ROW}, {v(vG0)}',
            f'v_add_u32 {v(dst+3)}, {v(dst+3)}, {v(patsh)}',
            f'v_subrev_u32 {v(dst+3)}, {72*ROW}, {v(dst+3)}']
def rd_kv(ad, ks, jj, off):
    if ks < 16:
        row = 72 * (ks >> 1) + 32 * (ks & 1) + 16 * jj
        return (ad, row * ROW + off) if row < 360 else (ad + 1, (row - 360) * ROW + off)
    return (ad + 2 + (ks - 16), 4 * jj * ROW + off)
def rd_q(ad, ks, jj, off):
    if ks < 16:
        cb = ks >> 1
        return (ad, (72 * (cb & 3) + 32 * (ks & 1) + 16 * jj) * ROW + 80 * (cb >> 2) + off)
    return (ad + 1, 4 * jj * ROW + 80 * (ks - 16) + off)
def rd_wo(ad, ks, jj, off):
    if ks < 16:
        row = 36 * ks + 8 * jj
        return (ad, row * ROW + off) if ks < 10 else (ad + 1, (row - 360) * ROW + off)
    return (ad + 2 + (ks - 16), 36 * jj * ROW + off)
def tr(dst, ai): return f'ds_read_b64_tr_b16 {dst}, {v(ai[0])} offset:{ai[1]}'
M16 = 'v_mfma_f32_16x16x32_bf16'; M32 = 'v_mfma_f32_32x32x16_bf16'

def prologue():
    P(f's_cmp_ge_u32 s2, 256')
    P(f's_cbranch_scc1 L_end')
    P(f's_load_dwordx16 s[80:95], s[0:1], 0')
    P(f's_load_dwordx2 {s(sWS,2)}, s[0:1], 64')
    P(f's_getpc_b64 {s(T0,2)}')
    P(f'v_lshlrev_b32 {v(vT)}, 7, v0')
    P(f'v_min_u32 {v(vT)}, CODE_LAST, {v(vT)}')
    P(f'global_load_dword {v(vT+1)}, {v(vT)}, {s(T0,2)}')
    P(f'v_add_u32 {v(vT)}, 32768, {v(vT)}')
    P(f'v_min_u32 {v(vT)}, CODE_LAST, {v(vT)}')
    P(f'global_load_dword {v(vT+2)}, {v(vT)}, {s(T0,2)}')
    P(f'v_lshrrev_b32 {v(vT+3)}, 6, v0')
    P(f'v_and_b32 {v(vLane)}, 63, v0')
    P(f'v_readfirstlane_b32 {s(s_w)}, {v(vT+3)}')
    P(f'''s_and_b32 {s(T0)}, s2, 7
          s_lshr_b32 {s(T0+1)}, s2, 3
          s_and_b32 {s(s_c)}, {s(T0+1)}, 15
          s_lshr_b32 {s(T0+1)}, {s(T0+1)}, 4
          s_lshl_b32 {s(s_r)}, {s(T0)}, 1
          s_add_u32 {s(s_r)}, {s(s_r)}, {s(T0+1)}
          s_and_b32 {s(s_cb)}, {s(s_c)}, 7
          s_lshr_b32 {s(s_hf)}, {s(s_c)}, 3
          s_mov_b32 {s(s_it)}, 0
          s_mov_b32 {s(s_rerun)}, 0
          s_mov_b32 {s(s_spin)}, 100000
          s_mov_b32 {s(s_lay)}, 1
          s_mov_b32 {s(s_mlo)}, -1
          s_mov_b32 {s(s_mlo+1)}, 0
          s_mov_b32 {s(s_mc12)}, 0xf000f000
          s_mov_b32 {s(s_mc12+1)}, 0xf000f000
          s_mov_b32 {s(s_ones)}, 0x3f803f80''')
    if DIAG: P(f'v_mov_b32 {v(vStamp)}, 0')
    stamp('start')
    t = vT + 4
    tok, g, rrr, pc, t32, hh, a0, a1, a2 = range(t, t + 9)
    P(f'''v_lshlrev_b32 {v(vL16)}, 4, {v(vLane)}
          v_mov_b32 {v(vZero)}, 0
          v_and_b32 {v(tok)}, 15, {v(vLane)}
          v_lshrrev_b32 {v(g)}, 4, {v(vLane)}
          v_lshrrev_b32 {v(rrr)}, 2, {v(tok)}
          v_and_b32 {v(pc)}, 3, {v(vLane)}
          v_and_b32 {v(t32)}, 31, {v(vLane)}
          v_lshrrev_b32 {v(hh)}, 5, {v(vLane)}''')
    rt = T0 + 2
    P(f'''s_lshl_b32 {s(rt)}, {s(s_hf)}, 2
          s_add_u32 {s(rt)}, {s(rt)}, {s(s_w)}
          s_lshl_b32 {s(T0)}, {s(s_r)}, 3
          s_add_u32 {s(T0+1)}, {s(T0)}, {s(rt)}
          s_mul_i32 {s(s_xwr)}, {s(T0+1)}, {XRT}
          s_add_u32 {s(s_xwr)}, {s(s_xwr)}, {XBUF}
          s_mul_i32 {s(s_ord)}, {s(T0+1)}, {ORT}
          s_add_u32 {s(s_ord)}, {s(s_ord)}, {OBUF}
          s_mul_i32 {s(s_xrow)}, {s(T0+1)}, {16*1152}
          s_lshl_b32 {s(T0+3)}, {s(s_w)}, 1
          s_add_u32 {s(T0+1)}, {s(T0)}, {s(T0+3)}
          s_mul_i32 {s(s_xrd)}, {s(T0+1)}, {XRT}
          s_add_u32 {s(s_xrd)}, {s(s_xrd)}, {XBUF}
          s_mul_i32 {s(s_owr)}, {s(T0+1)}, {ORT}
          s_add_u32 {s(s_owr)}, {s(s_owr)}, {OBUF}
          s_lshl_b32 {s(T0)}, {s(s_r)}, 2
          s_lshr_b32 {s(T0+1)}, {s(rt)}, 1
          s_add_u32 {s(T0+1)}, {s(T0+1)}, {s(T0)}
          s_lshl_b32 {s(T0+1)}, {s(T0+1)}, 7
          s_add_u32 {s(T0)}, {s(T0)}, {s(s_w)}
          s_lshl_b32 {s(T0+3)}, {s(T0)}, 7''')
    P(f'''s_lshl_b32 {s(T0+4)}, {s(s_cb)}, 1
          s_and_b32 {s(T0+5)}, {s(rt)}, 1
          s_add_u32 {s(T0+4)}, {s(T0+4)}, {s(T0+5)}
          s_lshl_b32 {s(T0+4)}, {s(T0+4)}, 2
          s_add_u32 {s(s_fxw)}, {s(T0+1)}, {s(T0+4)}
          s_lshl_b32 {s(T0+4)}, {s(s_c)}, 2
          s_add_u32 {s(s_fow)}, {s(T0+3)}, {s(T0+4)}
          s_add_u32 {s(s_fow)}, {s(s_fow)}, {FO}
          s_lshl_b32 {s(s_kvr)}, {s(s_c)}, 16
          s_add_u32 {s(s_kvr)}, {s(s_kvr)}, {KVP}
          s_lshl_b32 {s(T0+4)}, {s(s_r)}, 12
          s_add_u32 {s(s_kvw)}, {s(s_kvr)}, {s(T0+4)}
          s_lshl_b32 {s(T0+4)}, {s(s_c)}, 6
          s_add_u32 {s(T0+4)}, {s(T0+4)}, {s(T0)}
          s_mul_i32 {s(s_hw)}, {s(T0+4)}, 5120
          s_add_u32 {s(s_hw)}, {s(s_hw)}, {HALO}
          s_add_u32 {s(T0+1)}, {s(T0+1)}, {FO}''')
    P(f'''v_lshl_add_u32 {v(vFXp)}, {v(tok)}, 2, {s(T0+3)}
          v_lshl_add_u32 {v(vFOp)}, {v(tok)}, 2, {s(T0+1)}''')
    P(f'''s_lshl_b32 {s(T0)}, {s(s_w)}, 10
          v_add_u32 {v(vKVP)}, {s(T0)}, {v(vL16)}
          s_mov_b32 {s(T0+4)}, 0
          s_mov_b32 {s(T0+5)}, 0
          s_cmp_eq_u32 {s(s_w)}, 2
          s_cselect_b32 {s(T0+4)}, 0xe0e0e0e0, {s(T0+4)}
          s_cselect_b32 {s(T0+5)}, 0xe0e0e0e0, {s(T0+5)}
          s_cmp_eq_u32 {s(s_w)}, 3
          s_cselect_b32 {s(T0+5)}, 0xffffe0ff, {s(T0+5)}
          v_mov_b32 {v(a0)}, {OOB}
          v_cndmask_b32 {v(vKVP)}, {v(vKVP)}, {v(a0)}, {s(T0+4,2)}''')
    P(f'''v_mul_u32_u24 {v(a0)}, 7282, {v(vLane)}
          v_lshrrev_b32 {v(a0)}, 16, {v(a0)}
          v_mul_u32_u24 {v(a0)}, {1152-144}, {v(a0)}
          s_mul_i32 {s(T0+6)}, {s(s_cb)}, 144
          v_add3_u32 {v(vXO)}, {v(a0)}, {v(vL16)}, {s(T0+6)}''')
    P('s_waitcnt lgkmcnt(0)')
    for b, off in ((sX, 0), (sWA, 8), (sWOA, 16), (sWB, 32), (sWOB, 40), (sOUT, 48), (sDBG, 56)):
        P(f's_mov_b64 {s(b,2)}, {s(80+off//4,2)}')
    for b, n in ((sX, 2359296), (sWA, 1990656), (sWOA, 663552), (sWB, 1990656), (sWOB, 663552), (sOUT, 2359296), (sDBG, 256), (sWS, WS_SIZE)):
        P(f's_mov_b32 {s(b+2)}, {n}')
        P(f's_mov_b32 {s(b+3)}, 0x20000')
    pz = 64
    P([f'v_mov_b32 {v(pz+i)}, -1' for i in range(4)])
    P('s_mov_b64 exec, 1')
    P(f'buffer_store_dword {v(vZero)}, {v(vZero)}, {SRD(sWS)}, {s(s_fxw)} offen sc1', 'clr')
    P(f'buffer_store_dword {v(vZero)}, {v(vZero)}, {SRD(sWS)}, {s(s_fow)} offen sc1', 'clr')
    P('s_mov_b64 exec, -1')
    P(f's_add_u32 {s(T0)}, {s(s_kvw)}, {KVP_IT}')
    P(f'buffer_store_dwordx4 {v(pz,4)}, {v(vKVP)}, {SRD(sWS)}, {s(s_kvw)} offen sc1', 'clr')
    P(f'buffer_store_dwordx4 {v(pz,4)}, {v(vKVP)}, {SRD(sWS)}, {s(T0)} offen sc1', 'clr')
    P(f'''s_mul_i32 {s(T0+7)}, {s(s_w)}, 2304
          s_add_u32 {s(T0+7)}, {s(T0+7)}, {SPARE1}
          s_mov_b32 m0, {s(T0+7)}
          s_mov_b32 exec_hi, 0x7fffffff
          s_add_u32 {s(T0)}, {s(s_xrow)}, {7*1152-1008}
          s_add_u32 {s(T0+1)}, {s(s_xrow)}, {14*1152-2016}''')
    P(f'buffer_load_dwordx4 {v(vXO)}, {SRD(sX)}, {s(s_xrow)} offen lds', 'xt')
    P(f'buffer_load_dwordx4 {v(vXO)}, {SRD(sX)}, {s(T0)} offen offset:1008 lds', 'xt')
    P('s_mov_b64 exec, 0x3ffff')
    P(f'buffer_load_dwordx4 {v(vXO)}, {SRD(sX)}, {s(T0+1)} offen offset:2016 lds', 'xt')
    P('s_mov_b64 exec, -1')
    P(f'''v_mul_u32_u24 {v(a0)}, 6554, {v(vLane)}
          v_lshrrev_b32 {v(a0)}, 16, {v(a0)}
          v_mul_u32_u24 {v(a1)}, 10, {v(a0)}
          v_sub_u32 {v(a1)}, {v(vLane)}, {v(a1)}
          s_mul_i32 {s(T0)}, {s(s_c)}, 72
          v_mul_u32_u24 {v(a2)}, 3456, {v(a0)}
          v_lshl_add_u32 {v(a2)}, {v(a1)}, 4, {v(a2)}
          v_add_u32 {v(a2)}, {s(T0)}, {v(a2)}
          v_cmp_lt_u32 vcc, 4, {v(a1)}
          v_mov_b32 {v(vDKV)}, 1152
          v_mov_b32 {v(vDQ)}, {2304-80}
          v_cndmask_b32 {v(vDKV)}, {v(vDKV)}, {v(vDQ)}, vcc
          v_mov_b32 {v(vDQ)}, {288*3456-80}
          v_cndmask_b32 {v(vDQ)}, 0, {v(vDQ)}, vcc
          v_add_u32 {v(vDKV)}, {v(vDKV)}, {v(a2)}
          v_add_u32 {v(vDQ)}, {v(vDQ)}, {v(a2)}''')
    P(dma_p1('A'))
    P(f'''v_mul_u32_u24 {v(a2)}, 1152, {v(a0)}
          v_lshl_add_u32 {v(a2)}, {v(a1)}, 4, {v(a2)}
          v_add_u32 {v(a2)}, {s(T0+6)}, {v(a2)}
          v_cmp_eq_u32 vcc, 9, {v(a1)}
          v_mov_b32 {v(vDO)}, {OOB}
          v_cndmask_b32 {v(vDO)}, {v(a2)}, {v(vDO)}, vcc''')
    P(f'''v_lshl_add_u32 {v(a0)}, {v(g)}, 2, {v(rrr)}
          v_mul_u32_u24 {v(a0)}, {ROW}, {v(a0)}
          v_lshl_add_u32 {v(pMain)}, {v(pc)}, 3, {v(a0)}
          v_lshrrev_b32 {v(a1)}, 1, {v(pc)}
          v_lshlrev_b32 {v(a1)}, 6, {v(a1)}
          v_add_u32 {v(a1)}, 32, {v(a1)}
          v_add_u32 {v(pL)}, {v(pMain)}, {v(a1)}
          v_mul_u32_u24 {v(a0)}, 72, {v(g)}
          v_add_u32 {v(a0)}, {v(a0)}, {v(rrr)}
          v_mul_u32_u24 {v(a0)}, {ROW}, {v(a0)}
          v_lshl_add_u32 {v(a0)}, {v(pc)}, 3, {v(a0)}
          v_add_u32 {v(pSh)}, {64*ROW}, {v(a0)}
          v_add_u32 {v(pLSh)}, {v(pSh)}, {v(a1)}
          v_add_u32 {v(pOSh)}, {16*ROW}, {v(a0)}
          v_mul_u32_u24 {v(a0)}, {12*ROW}, {v(hh)}
          v_add_u32 {v(pO)}, {v(pMain)}, {v(a0)}
          v_cmp_eq_u32 vcc, 0, {v(g)}
          v_cndmask_b32 {v(vG0)}, 0, -1, vcc''')
    P(f'''s_lshr_b32 {s(T0)}, {s(s_cb)}, 2
          s_lshl_b32 {s(T0)}, {s(T0)}, 10
          s_and_b32 {s(T0+1)}, {s(s_cb)}, 3
          s_lshl_b32 {s(T0+1)}, {s(T0+1)}, 8
          s_add_u32 {s(T0)}, {s(T0)}, {s(T0+1)}
          s_add_u32 {s(T0)}, {s(T0)}, {16*1024}
          v_lshlrev_b32 {v(a0)}, 4, {v(tok)}
          v_lshl_add_u32 {v(a1)}, {v(g)}, 3, {v(a0)}
          v_add_u32 {v(a1)}, {s(T0)}, {v(a1)}
          v_lshl_or_b32 {v(vXT4)}, {v(hh)}, 28, {v(a1)}
          s_lshr_b32 {s(T0)}, {s(s_cb)}, 1
          s_lshl_b32 {s(T0)}, {s(T0)}, 8
          s_and_b32 {s(T0+1)}, {s(s_cb)}, 1
          s_lshl_b32 {s(T0+1)}, {s(T0+1)}, 3
          s_add_u32 {s(T0)}, {s(T0)}, {s(T0+1)}
          s_add_u32 {s(T0+2)}, {s(T0)}, {18*1024}
          v_lshl_add_u32 {v(a1)}, {v(hh)}, 2, {v(a0)}
          v_add_u32 {v(a1)}, {s(T0+2)}, {v(a1)}
          v_and_b32 {v(a2)}, 1, {v(g)}
          v_lshl_or_b32 {v(vXST)}, {v(a2)}, 28, {v(a1)}
          v_mul_u32_u24 {v(a2)}, {ORT}, {v(a2)}
          v_add_u32 {v(a2)}, {v(a2)}, {v(a0)}
          s_lshl_b32 {s(T0+1)}, {s(s_c)}, 10
          v_lshl_add_u32 {v(a1)}, {v(hh)}, 8, {v(a2)}
          v_add_u32 {v(vOM)}, {s(T0+1)}, {v(a1)}
          s_lshl_b32 {s(T0+1)}, {s(s_hf)}, 10
          s_add_u32 {s(T0)}, {s(T0)}, {s(T0+1)}
          s_add_u32 {s(T0)}, {s(T0)}, {16*1024}
          v_add_u32 {v(a2)}, {s(T0)}, {v(a2)}
          v_lshl_or_b32 {v(vOL)}, {v(hh)}, 28, {v(a2)}
          v_lshlrev_b32 {v(a0)}, 6, {v(hh)}
          v_xor_b32 {v(vRV)}, {v(vL16)}, {v(a0)}
          v_add_u32 {v(a0)}, 640, {v(vL16)}
          v_and_b32 {v(vRL)}, 1023, {v(a0)}''')
    P(f'''v_mul_u32_u24 {v(a0)}, 144, {v(tok)}
          v_lshl_add_u32 {v(a0)}, {v(g)}, 3, {v(a0)}
          v_add_u32 {v(a0)}, {s(T0+7)}, {v(a0)}''')
    P.wait_vm('clr')
    P('s_barrier')
    P(f's_getreg_b32 {s(T0)}, hwreg(HW_REG_XCC_ID, 0, 4)')
    P(f's_or_b32 {s(T0)}, {s(T0)}, 0x80')
    P(f's_lshl_b32 {s(T0+1)}, {s(s_r)}, 4')
    P(f's_add_u32 {s(T0+2)}, {s(T0+1)}, {s(s_c)}')
    P(f'v_mov_b32 {v(a1)}, {s(T0)}')
    def dbgbyte():
        P('s_mov_b64 exec, 1')
        P(f'buffer_store_byte {v(a1)}, {v(vZero)}, {SRD(sDBG)}, {s(T0+2)} offen sc1')
        P('s_mov_b64 exec, -1')
    skip_if(f's_cmp_lg_u32 {s(s_w)}, 0', dbgbyte)
    stamp('byte')
    halo_poison(s_hw, pz)
    P.wait_vm('xt')
    PK = 68
    for t_ in range(5): P(f'ds_read_b64 {v(PK+2*t_,2)}, {v(a0)} offset:{32*t_}')
    for i in range(2): P(f'v_cndmask_b32 {v(PK+8+i)}, 0, {v(PK+8+i)}, {s(s_mlo,2)}')
    for i in range(10):
        P(f'v_lshlrev_b32 {v(XACC+2*i)}, 16, {v(PK+i)}')
        P(f'v_and_b32 {v(XACC+2*i+1)}, 0xffff0000, {v(PK+i)}')
    stamp('xtile')
    P(f's_mul_i32 {s(T0)}, {s(T0)}, 0x01010101')
    P(f'v_lshl_add_u32 {v(a2)}, {v(pc)}, 2, {s(T0+1)}')
    l = P.label('poll')
    P.settle()
    P(f'{l}:')
    P(f'buffer_load_dword {v(vT)}, {v(a2)}, {SRD(sDBG)}, 0 offen sc1')
    spin_pre()
    P('s_waitcnt vmcnt(0)')
    P(f'v_and_b32 {v(vT+1)}, 0x80808080, {v(vT)}')
    P(f'v_cmp_ne_u32 vcc, 0x80808080, {v(vT+1)}')
    spin_post(l)
    P(f'v_cmp_ne_u32 vcc, {s(T0)}, {v(vT)}')
    P(f's_cmp_eq_u64 vcc, 0')
    P(f's_cselect_b32 {s(s_fast)}, {0 if FORCE_SLOW else 1}, 0')
    stamp('team')
    publish_x(PK, packed=True)
    P(dma_p2('A'))
    P(dma_q('A'))

def halo_poison(sreg, pz):
    P(f's_add_u32 {s(T0+8)}, {s(sreg)}, 4096')
    for i in range(4): P(f'buffer_store_dwordx4 {v(pz,4)}, {v(vL16)}, {SRD(sWS)}, {s(sreg)} offen offset:{1024*i} sc1')
    P(f'buffer_store_dwordx4 {v(pz,4)}, {v(vL16)}, {SRD(sWS)}, {s(T0+8)} offen sc1')

def pack_x(PK):
    for i in range(10): P(f'v_cvt_pk_bf16_f32 {v(PK+i)}, {v(XACC+2*i)}, {v(XACC+2*i+1)}')

def publish_x(PK, packed=False):
    if not packed: pack_x(PK)
    P(f's_lshl_b32 {s(T0)}, {s(s_cb)}, 11')
    P(f's_add_u32 {s(T0)}, {s(T0)}, {s(s_xwr)}')
    sa, qa, sb, qb = vT, vT + 1, vT + 2, vT + 3
    def body(sc):
        P(f'buffer_store_dwordx4 {v(PK,4)}, {v(vL16)}, {SRD(sWS)}, {s(T0)} offen{sc}')
        P(f'buffer_store_dwordx4 {v(PK+4,4)}, {v(vL16)}, {SRD(sWS)}, {s(T0)} offen offset:1024{sc}')
        P(f'buffer_store_dwordx2 {v(PK+8,2)}, {v(vXT4)}, {SRD(sWS)}, {s(s_xwr)} offen{sc}')
        for i in range(10):
            ss, qq = (sa, qa) if i % 2 == 0 else (sb, qb)
            P(f'v_dot2_f32_bf16 {v(ss)}, {v(PK+i)}, {s(s_ones)}, {v(ss) if i >= 2 else 0}')
            P(f'v_dot2_f32_bf16 {v(qq)}, {v(PK+i)}, {v(PK+i)}, {v(qq) if i >= 2 else 0}')
        P(f'''v_add_f32 {v(sa)}, {v(sa)}, {v(sb)}
              v_add_f32 {v(qa)}, {v(qa)}, {v(qb)}
              v_permlane32_swap_b32 {v(sa)}, {v(qa)}
              v_add_f32 {v(sa)}, {v(sa)}, {v(qa)}
              v_mov_b32 {v(qa)}, {v(sa)}
              v_permlane16_swap_b32 {v(sa)}, {v(qa)}
              v_add_f32 {v(sa)}, {v(sa)}, {v(qa)}''')
        P(f'buffer_store_dword {v(sa)}, {v(vXST)}, {SRD(sWS)}, {s(s_xwr)} offen{sc}')
        P(f'v_mov_b32 {v(sb)}, {s(s_lay)}')
        P('s_mov_b64 exec, 1')
        P('s_waitcnt vmcnt(0)')
        P(f'buffer_store_dword {v(sb)}, {v(vZero)}, {SRD(sWS)}, {s(s_fxw)} offen{sc}')
        P('s_mov_b64 exec, -1')
    alt(body)
    P(f's_add_u32 {s(s_xwr)}, {s(s_xwr)}, {BUF_L}')

ACC1, ACC2 = 64, 104
AD, ADL, ADQ = 128, 132, 136
VA1 = 138
ST = 140
RS, NM = 148, 150
RS4, NM4, RS42 = 152, 160, 168
CSR = 176
BIAS = 196
PKR = 236
QOP = 64
def AF(rt, ks): return a((rt * 18 + ks) * 4, 4)
BB = 144
def BF(buf, t, jj=None): return a(BB + 20 * buf + 4 * t, 4) if jj is None else a(BB + 20 * buf + 4 * t + 2 * jj, 2)

def cs_round(rd, ad, dst_s, typ):
    acc, ones = vT + 4, vT + 8
    P([f'v_mov_b32 {v(ones+i)}, {s(s_ones)}' for i in range(4)])
    fr = lambda n, jj=None: a(BB + 4 * (n % 6), 4) if jj is None else a(BB + 4 * (n % 6) + 2 * jj, 2)
    for n in range(18 + 4):
        if n < 18:
            for jj in range(2): P(tr(fr(n, jj), rd(ad, n, jj, 0)))
        if n >= 4:
            m = n - 4
            P(f'{M16} {v(acc,4)}, {fr(m)}, {v(ones,4)}, {v(acc,4) if m else 0}')
    P(f'v_and_b32 {v(vT+12)}, 48, {v(vLane)}')
    P(f'v_add_u32 {v(vT+12)}, {dst_s}, {v(vT+12)}')
    P(f'v_add_u32 {v(vT+12)}, {CS[typ]}, {v(vT+12)}')
    P('s_mov_b32 exec_lo, 0x00010001')
    P('s_mov_b32 exec_hi, 0x00010001')
    P(f'ds_write_b128 {v(vT+12)}, {v(acc,4)}')
    P('s_mov_b64 exec, -1')

def stats_code(typ):
    L = []
    s0, s1 = ST, ST + 4
    L += [f'v_add_f32 {v(s0)}, {v(s0)}, {v(s0+2)}', f'v_add_f32 {v(s0+1)}, {v(s0+1)}, {v(s0+3)}',
          f'v_add_f32 {v(s1)}, {v(s1)}, {v(s1+2)}', f'v_add_f32 {v(s1+1)}, {v(s1+1)}, {v(s1+3)}',
          f'v_permlane32_swap_b32 {v(s0)}, {v(s0+1)}', f'v_permlane32_swap_b32 {v(s1)}, {v(s1+1)}',
          f'v_add_f32 {v(s0)}, {v(s0)}, {v(s0+1)}', f'v_add_f32 {v(s1)}, {v(s1)}, {v(s1+1)}',
          f'v_permlane16_swap_b32 {v(s0)}, {v(s1)}',
          f'v_add_f32 {v(s0)}, {v(s0)}, {v(s1)}',
          f'v_mul_f32 {v(s0)}, {H(f2u(1/576))}, {v(s0)}',
          f'v_mov_b32 {v(s1)}, {v(s0)}',
          f'v_permlane32_swap_b32 {v(s0)}, {v(s1)}',
          f'v_fma_f32 {v(s1)}, -{v(s0)}, {v(s0)}, {v(s1)}',
          f'v_max_f32 {v(s1)}, 0, {v(s1)}',
          f'v_add_f32 {v(s1)}, {H(f2u(1e-5))}, {v(s1)}',
          f'v_rsq_f32 {v(RS)}, {v(s1)}',
          f'v_mul_f32 {v(NM)}, -{v(s0)}, {v(RS)}']
    if typ == 'A':
        L += [f'v_cndmask_b32 {v(s0)}, {v(NM)}, {v(RS)}, {s(s_mlo,2)}',
              f's_lshl_b32 {s(T0)}, {s(s_w)}, 8',
              f's_add_u32 {s(T0)}, {s(T0)}, {STS}',
              f'v_lshl_add_u32 {v(s0+1)}, {v(vLane)}, 2, {s(T0)}',
              f'v_and_b32 {v(s0+2)}, 48, {v(vLane)}',
              f'v_add_u32 {v(s0+2)}, {s(T0)}, {v(s0+2)}',
              f'ds_write_b32 {v(s0+1)}, {v(s0)}',
              f'ds_read_b128 {v(RS4,4)}, {v(s0+2)}', f'ds_read_b128 {v(RS4+4,4)}, {v(s0+2)} offset:64',
              f'ds_read_b128 {v(NM4,4)}, {v(s0+2)} offset:128', f'ds_read_b128 {v(NM4+4,4)}, {v(s0+2)} offset:192']
    L += [f'v_mov_b32 {v(RS+1)}, {v(RS)}', f'v_mov_b32 {v(NM+1)}, {v(NM)}',
          f'v_permlane16_swap_b32 {v(RS)}, {v(RS+1)}', f'v_permlane16_swap_b32 {v(NM)}, {v(NM+1)}']
    if typ == 'A':
        L += [f'v_and_b32 {v(s0+3)}, 15, {v(vLane)}', f'v_lshlrev_b32 {v(s0+3)}, 2, {v(s0+3)}', f'v_add_u32 {v(s0+3)}, {CS["A"]}, {v(s0+3)}']
        L += [f'ds_read_b32 {v(CSR+t)}, {v(s0+3)} offset:{64*t}' for t in range(5)]
        L += [f'v_mul_f32 {v(RS42+i)}, {H(f2u(LOG2E))}, {v(RS4+i)}' for i in range(8)]
        L += [f'v_mul_f32 {v(CSR+t)}, {H(f2u(LOG2E))}, {v(CSR+t)}' for t in (0, 1, 4)]
        L += [f'v_mul_f32 {v(BIAS+8*t+i)}, {v(NM4+i)}, {v(CSR+t)}' for t in range(5) for i in range(8)]
    else:
        L += [f'v_and_b32 {v(s0+3)}, 48, {v(vLane)}', f'v_add_u32 {v(s0+3)}, {CS["B"]}, {v(s0+3)}']
        L += [f'ds_read_b128 {v(CSR+4*t,4)}, {v(s0+3)} offset:{64*t}' for t in range(5)]
        L += [f'v_mul_f32 {v(BIAS+8*t+4*rt+j)}, {v(NM+rt)}, {v(CSR+4*t+j)}' for t in range(5) for rt in range(2) for j in range(4)]
    return L

def gemm_pass(nt, rdf, acc, ct, side, pre_done=False):
    reads = lambda n: [tr(BF(n % 3, t, jj), rdf(KORD[n], t, jj)) for t in range(nt) for jj in range(2)]
    if not pre_done: P(reads(0) + reads(1))
    per = -(-len(side) // 16) if side else 0
    for n, ks in enumerate(KORD):
        mf = []
        for t in range(nt):
            for rt in range(2):
                d = v(acc + 8 * t + 4 * rt, 4)
                x, w_ = AF(rt, ks), BF(n % 3, t)
                mf.append(f'{M16} {d}, {w_ if ct else x}, {x if ct else w_}, {d if n else 0}')
        extra = reads(n + 2) if n + 2 < 18 else []
        sd = side[(n - 1) * per:n * per] if n >= 1 else []
        P.need(a(BB + 20 * (n % 3), 4 * nt), AF(0, ks), AF(1, ks))
        P(interleave(mf, interleave(extra, sd) if extra else sd))

def phi(reg, tmp):
    return [f'v_exp_f32 {v(tmp)}, {v(reg)} clamp',
            f'v_max_f32 {v(reg)}, {H(f2u(1e-6*LOG2E))}, {v(reg)}',
            f'v_fma_f32 {v(reg)}, {v(reg)}, {s(T0+9)}, {v(tmp)}']

def o_publish(O, eps):
    pk = vT + 4
    for hl in range(2):
        o = O + 16 * hl
        if eps: P(f'v_add_f32 {v(o+12)}, {H(f2u(eps))}, {v(o+12)}')
        P(f'v_rcp_f32 {v(o+12)}, {v(o+12)}')
    for hl in range(2):
        o = O + 16 * hl
        idx = list(range(8)) + [8 + 2 * hl, 9 + 2 * hl]
        for i in idx: P(f'v_mul_f32 {v(o+i)}, {v(o+12)}, {v(o+i)}')
        for i in range(4): P(f'v_cvt_pk_bf16_f32 {v(pk+4*hl+i)}, {v(o+2*i)}, {v(o+2*i+1)}')
        P(f'v_cvt_pk_bf16_f32 {v(pk+8+hl)}, {v(o+8+2*hl)}, {v(o+9+2*hl)}')
    def body(sc):
        P(f'buffer_store_dwordx4 {v(pk,4)}, {v(vOM)}, {SRD(sWS)}, {s(s_owr)} offen{sc}', 'ost')
        P(f'buffer_store_dwordx4 {v(pk+4,4)}, {v(vOM)}, {SRD(sWS)}, {s(s_owr)} offen offset:512{sc}', 'ost')
        P(f'buffer_store_dwordx2 {v(pk+8,2)}, {v(vOL)}, {SRD(sWS)}, {s(s_owr)} offen{sc}', 'ost')
    alt(body)

def o_flag():
    P(f'v_mov_b32 {v(vT)}, {s(s_lay)}')
    P('s_mov_b64 exec, 1')
    P.wait_vm('ost')
    alt(lambda sc: P(f'buffer_store_dword {v(vT)}, {v(vZero)}, {SRD(sWS)}, {s(s_fow)} offen{sc}'))
    P('s_mov_b64 exec, -1')

def WF(n, t, jj=None):
    f, b = (a, 20 * n) if n < 12 else (v, 64 + 20 * (n - 12))
    return f(b + 4 * t, 4) if jj is None else f(b + 4 * t + 2 * jj, 2)
OA = 184
def wo_phase(typ, after_flag):
    nxt = 'B' if typ == 'A' else 'A'
    ad = vT + 14
    P(img_addrs(ad, pO, pOSh, PART1[typ]))
    reads = [tr(WF(n, t, jj), rd_wo(ad, n, jj, 32 * t)) for n in range(18) for t in range(5) for jj in range(2)]
    P(reads[:50])
    o_flag()
    stamp('oflag')
    after_flag()
    P(reads[50:120])
    poll(vFOp)
    stamp('opoll')
    for n in range(18):
        if n % 4 == 0: P(f's_add_u32 {s(T0)}, {s(s_ord)}, {1024*n}')
        P(f'buffer_load_dwordx4 {v(OA+4*n,4)}, {v(vL16)}, {SRD(sWS)}, {s(T0)} offen offset:{1024*(n%4)} sc1')
    P(reads[120:])
    P(f's_add_u32 {s(s_owr)}, {s(s_owr)}, {BUF_L}')
    P(f's_add_u32 {s(s_ord)}, {s(s_ord)}, {BUF_L}')
    P(f's_add_u32 {s(s_lay)}, {s(s_lay)}, 1')
    for n in range(18):
        if n == 12:
            P.wait_all(vm=False)
            P('s_barrier')
        for t in range(5):
            P(f'{M16} {v(XACC+4*t,4)}, {WF(n,t)}, {v(OA+4*n,4)}, {v(XACC+4*t,4)}')
    stamp('wo')

SB, PB, OB, KB, LB, VB, MK = 80, 112, 128, 160, 168, 176, 192
aK, aL, aV = 224, 225, 226
HS = 0
def attn_seq(js, first):
    units = [(j, hl) for j in js for hl in range(2)]
    n = len(units)
    def kload(u):
        j, hl = units[u]
        L = [f'ds_read_b128 {v(KB+4*(u%2),4)}, {v(aK)} offset:{5120*j + 1024*hl}']
        if hl == 0: L.append(f'ds_read_b128 {v(LB+4*((u//2)%2),4)}, {v(aL)} offset:{5120*j}')
        return L
    def vload(u):
        j, hl = units[u]
        return [f'ds_read_b64_tr_b16 {v(VB+8*(u%2)+4*i+2*jj,2)}, {v(aV+hl)} offset:{5120*j + 256*i + 128*jj}' for i in range(2) for jj in range(2)]
    def qk(u):
        j, hl = units[u]
        S = v(SB + 16 * (u % 2), 16)
        c0 = v(MK, 16) if j == 8 else (v(MK + 16, 16) if j == 0 else '0')
        return [f'{M32} {S}, {v(KB+4*(u%2),4)}, {v(QOP+4*hl,4)}, {c0}',
                f'{M32} {S}, {v(LB+4*((u//2)%2),4)}, {v(QOP+8+4*hl,4)}, {S}']
    def pv(u):
        j, hl = units[u]
        O = v(OB + 16 * hl, 16)
        return [f'{M32} {O}, {v(VB+8*(u%2)+4*i,4)}, {v(PB+8*(u%2)+4*i,4)}, {0 if (first and u < 2 and i == 0) else O}' for i in range(2)]
    P(kload(0))
    if n > 1: P(kload(1))
    P(qk(0))
    for u in range(n):
        S = SB + 16 * (u % 2)
        mf = (qk(u + 1) if u + 1 < n else [None, None]) + (pv(u - 1) if u >= 1 else [None, None])
        vl = vload(u)
        kl = kload(u + 2) if u + 2 < n else []
        for q in range(4):
            if mf[q]: P(mf[q])
            if q == 2: P(kl)
            P(vl[q])
            P([f'v_exp_f32 {v(S+4*q+i)}, {v(S+4*q+i)}' for i in range(4)])
            P([f'v_cvt_pk_bf16_f32 {v(PB+8*(u%2)+2*q+i)}, {v(S+4*q+2*i)}, {v(S+4*q+2*i+1)}' for i in range(2)])
    P(pv(n - 1))

def layer(typ):
    nxt = 'B' if typ == 'A' else 'A'
    P(img_addrs(AD, pMain, pSh, PART1[typ]) + img_addrs(ADL, pL, pLSh, PART1[typ]))
    P(f'v_add_u32 {v(ADQ)}, {QIMG[typ]}, {v(pMain)}')
    P(f'v_add_u32 {v(ADQ+1)}, {QIMG[typ]}, {v(pSh)}')
    P(f'v_add_u32 {v(VA1)}, {XRT}, {v(vL16)}')
    P('s_waitcnt vmcnt(0)')
    P('s_barrier')
    stamp('wland')
    def cs_first():
        t = vT
        P(f's_mul_i32 {s(T0)}, {s(s_w)}, 40')
        P([f'v_add_u32 {v(t+i)}, {s(T0)}, {v(AD+i)}' for i in range(4)])
        P(f's_lshl_b32 {s(T0)}, {s(s_w)}, 6')
        cs_round(rd_kv, t, s(T0), typ)
        cs_round(rd_kv, ADL, 256, typ)
        P(f'''s_cmp_eq_u32 {s(s_w)}, 0
              s_cselect_b32 {s(T0)}, 0, 32
              s_cmp_eq_u32 {s(s_w)}, 1
              s_cselect_b32 {s(T0)}, 40, {s(T0)}
              s_min_u32 {s(T0+1)}, {s(s_w)}, 2
              s_lshl_b32 {s(T0+1)}, {s(T0+1)}, 6
              s_add_u32 {s(T0+1)}, {s(T0+1)}, 320''')
        P([f'v_add_u32 {v(t+i)}, {s(T0)}, {v(ADQ+i)}' for i in range(2)])
        cs_round(rd_q, t, s(T0+1), typ)
        P.wait_all(vm=False)
        P('s_barrier')
    skip_if(f's_cmp_lg_u32 {s(s_it)}, 0', cs_first)
    rd1 = lambda ks, t, jj: rd_kv(AD, ks, jj, 40 * t) if t < 4 else rd_kv(ADL, ks, jj, 0)
    P([tr(BF(n, t, jj), rd1(KORD[n], t, jj)) for n in range(2) for t in range(5) for jj in range(2)])
    stamp('cs')
    poll(vFXp)
    stamp('xpoll')
    P(f's_add_u32 {s(T0)}, {s(s_xrd)}, {16*1024}')
    P(f'buffer_load_dwordx4 {v(ST,4)}, {v(vL16)}, {SRD(sWS)}, {s(T0)} offen offset:2048 sc1')
    P(f'buffer_load_dwordx4 {v(ST+4,4)}, {v(VA1)}, {SRD(sWS)}, {s(T0)} offen offset:2048 sc1')
    for i in range(1, 4): P(f's_add_u32 {s(T0+i)}, {s(s_xrd)}, {4096*i}')
    for ks in KORD:
        so = s(s_xrd) if ks < 4 else (s(T0) if ks >= 16 else s(T0 + ks // 4))
        for rt in range(2):
            P(f'buffer_load_dwordx4 {AF(rt,ks)}, {v(VA1 if rt else vL16)}, {SRD(sWS)}, {so} offen offset:{1024*(ks%4)} sc1')
    P(f's_add_u32 {s(s_xrd)}, {s(s_xrd)}, {BUF_L}')
    P(f's_mov_b32 {s(T0+9)}, {H(f2u(LN2))}')
    gemm_pass(5, rd1, ACC1, typ == 'B', stats_code(typ), pre_done=True)
    stamp('pass1')
    rd2 = lambda ks, t, jj: rd_q(ADQ, ks, jj, (0, 40, 32)[t])
    if typ == 'A':
        A_ = lambda t, i: ACC1 + 8 * t + i
        for t in (0, 1, 4, 2, 3):
            rs = RS42 if t in (0, 1, 4) else RS4
            P([f'v_fma_f32 {v(A_(t,i))}, {v(A_(t,i))}, {v(rs+i)}, {v(BIAS+8*t+i)}' for i in range(8)])
        P([f'v_mul_f32 {v(BIAS+i)}, {s(T0+9)}, {v(A_(4,i))}' for i in range(8)])
        LBs = vT + 4
        P([f'v_cvt_pk_bf16_f32 {v(LBs+i)}, {v(BIAS+2*i)}, {v(BIAS+2*i+1)}' for i in range(4)])
        P(f'v_mov_b32 {v(vT)}, {s(s_ones)}')
        P([f'v_cndmask_b32 {v(LBs+i)}, {v(LBs+i)}, {v(vT)}, {s(s_mc12,2)}' for i in range(4)])
        for t in (2, 3): P([f'v_cvt_pk_bf16_f32 {v(PKR+4*t+i)}, {v(A_(t,2*i))}, {v(A_(t,2*i+1))}' for i in range(4)])
        D = BIAS + 8
        pk = lambda t: v(PKR + 4 * t, 4)
        prods = {0: [(0, pk(2)), (2, v(LBs, 4))], 1: [(1, pk(3)), (3, v(LBs, 4))], 4: [(4, pk(2)), (5, pk(3)), (6, v(LBs, 4))]}
        for t in (0, 1, 4):
            for i in range(0, 8, 2):
                x, y = phi(A_(t, i), vT + 1), phi(A_(t, i + 1), vT + 2)
                P([x[0], y[0], x[1], y[1], x[2], y[2]])
                P(f'v_cvt_pk_bf16_f32 {v(PKR+4*t+i//2)}, {v(A_(t,i))}, {v(A_(t,i+1))}')
            for d, b in prods[t]: P(f'{M16} {v(D+4*d,4)}, {pk(t)}, {b}, 0')
        P(f'''s_mul_i32 {s(T0)}, {s(s_w)}, 3792
              s_add_u32 {s(T0)}, {s(T0)}, {SPARE1}
              s_cmp_eq_u32 {s(s_w)}, 3
              s_cselect_b32 {s(T0)}, {SPARE2}, {s(T0)}
              v_add_u32 {v(vT)}, {s(T0)}, {v(vL16)}
              s_lshl_b32 {s(T0)}, {s(s_w)}, 10
              s_add_u32 {s(T0+1)}, {s(T0)}, {SPARE1}
              s_add_u32 {s(T0)}, {s(T0)}, {SPARE2}
              v_add_u32 {v(vT+1)}, {s(T0+1)}, {v(vL16)}
              v_add_u32 {v(vT+2)}, {s(T0)}, {v(vL16)}''')
        P(f'ds_write_b128 {v(vT)}, {v(D,4)}')
        P(f'ds_write_b128 {v(vT)}, {v(D+4,4)} offset:1024')
        P('s_mov_b32 exec_lo, 0x1f001f00\ns_mov_b32 exec_hi, 0x1f001f00')
        P(f'ds_write_b128 {v(vT)}, {v(D+8,4)} offset:2048')
        P(f'ds_write_b128 {v(vT)}, {v(D+12,4)} offset:{2048-128}')
        P('s_mov_b64 exec, 0xffff')
        P(f'ds_write_b128 {v(vT)}, {v(D+16,4)} offset:3072')
        P(f'ds_write_b128 {v(vT)}, {v(D+20,4)} offset:{3072+256}')
        P('s_mov_b64 exec, 0x1f00')
        P(f'ds_write_b128 {v(vT)}, {v(D+24,4)} offset:{3072+512}')
        P('s_mov_b64 exec, -1')
        P.wait_all(vm=False)
        P('s_barrier')
        G = BIAS
        for i in range(3): P(f'ds_read_b128 {v(G+4*i,4)}, {v(vT+1)} offset:{3792*i}')
        P(f'ds_read_b128 {v(G+12,4)}, {v(vT+2)}')
        P([f'v_add_f32 {v(G+i)}, {v(G+i)}, {v(G+4+i)}' for i in range(4)])
        P([f'v_add_f32 {v(G+8+i)}, {v(G+8+i)}, {v(G+12+i)}' for i in range(4)])
        P([f'v_add_f32 {v(G+i)}, {v(G+i)}, {v(G+8+i)}' for i in range(4)])
        P(f'buffer_store_dwordx4 {v(G,4)}, {v(vKVP)}, {SRD(sWS)}, {s(s_kvw)} offen sc1')
    else:
        P(f'''s_mul_i32 {s(T0)}, {s(s_w)}, 5120
              s_add_u32 {s(T0)}, {s(T0)}, {REC + 8*5120}
              s_add_u32 {s(T0+1)}, {s(s_hw)}, 4096
              v_add_u32 {v(vT)}, {s(T0)}, {v(vL16)}
              v_add_u32 {v(vT+1)}, {s(T0)}, {v(vRV)}
              v_add_u32 {v(vT+2)}, {s(T0)}, {v(vRL)}''')
        for t in range(5):
            A_ = ACC1 + 8 * t; pk = PKR + 4 * t
            P([f'v_fma_f32 {v(A_+i)}, {v(A_+i)}, {v(RS+i//4)}, {v(BIAS+8*t+i)}' for i in range(8)])
            P([f'v_cvt_pk_bf16_f32 {v(pk+i)}, {v(A_+2*i)}, {v(A_+2*i+1)}' for i in (0, 2, 1, 3)])
            P([f'v_permlane16_swap_b32 {v(pk+i)}, {v(pk+2+i)}' for i in range(2)])
            if t == 4: P([f'v_mov_b32 {v(pk+2+i)}, {s(s_ones)}' for i in range(2)])
            va = (vL16, vL16, vRV, vRV, vRL)[t]
            if t < 4: P(f'buffer_store_dwordx4 {v(pk,4)}, {v(va)}, {SRD(sWS)}, {s(s_hw)} offen offset:{1024*t} sc1')
            else: P(f'buffer_store_dwordx4 {v(pk,4)}, {v(va)}, {SRD(sWS)}, {s(T0+1)} offen sc1')
        for t in range(5):
            P(f'ds_write_b128 {v(vT + (0,0,1,1,2)[t])}, {v(PKR+4*t,4)} offset:{1024*t}')
        P.wait_all(vm=False)
        P('s_barrier')
    stamp('pub1')
    P(dma_wo(typ))
    qs = LOG2E if typ == 'A' else LOG2E * 18 ** -0.5
    side = [f'v_and_b32 {v(ST)}, 48, {v(vLane)}', f'v_add_u32 {v(ST)}, {CS[typ]+320}, {v(ST)}']
    side += [f'ds_read_b128 {v(CSR+4*t,4)}, {v(ST)} offset:{64*t}' for t in range(3)]
    side += [f'v_mul_f32 {v(r_)}, {H(f2u(qs))}, {v(r_)}' for r_ in (RS, RS + 1, NM, NM + 1)]
    side += [f'v_mul_f32 {v(BIAS+8*t+4*rt+j)}, {v(NM+rt)}, {v(CSR+4*t+j)}' for t in range(3) for rt in range(2) for j in range(4)]
    gemm_pass(3, rd2, ACC2, True, side)
    for t in range(3):
        A_ = ACC2 + 8 * t; pk = QOP + 4 * t if t < 2 else vT + 4
        P([f'v_fma_f32 {v(A_+i)}, {v(A_+i)}, {v(RS+i//4)}, {v(BIAS+8*t+i)}' for i in range(8)])
        if typ == 'A':
            for i in range(0, 8, 2):
                x, y = phi(A_ + i, vT + 1), phi(A_ + i + 1, vT + 2)
                P([x[0], y[0], x[1], y[1], x[2], y[2]])
        P([f'v_cvt_pk_bf16_f32 {v(pk+i)}, {v(A_+2*i)}, {v(A_+2*i+1)}' for i in (0, 2, 1, 3)])
        P([f'v_permlane16_swap_b32 {v(pk+i)}, {v(pk+2+i)}' for i in range(2)])
    P([f'v_mov_b32 {v(QOP+8+i)}, 0' for i in (1, 2, 3, 4, 6, 7)])
    P(f'v_cndmask_b32 {v(QOP+8)}, 0, {v(vT+4)}, {s(s_mlo,2)}')
    P(f'v_cndmask_b32 {v(QOP+13)}, 0, {v(vT+5)}, {s(s_mlo,2)}')
    P.wait_all(vm=False)
    P('s_barrier')
    stamp('pass2')
    if typ == 'A':
        P(dma_p1(nxt))
        def colcheck():
            l = P.label('poll')
            P(f'v_lshlrev_b32 {v(vT+2)}, 2, {v(vLane)}')
            P.settle()
            P(f'{l}:')
            P(f'buffer_load_dword {v(vT)}, {v(vT+2)}, {SRD(sDBG)}, 0 offen sc1')
            spin_pre()
            P('s_waitcnt vmcnt(0)')
            P(f'v_and_b32 {v(vT+1)}, 0x80808080, {v(vT)}')
            P(f'v_cmp_ne_u32 vcc, 0x80808080, {v(vT+1)}')
            spin_post(l)
        skip_if(f's_cmp_lg_u32 {s(s_it)}, 0', colcheck)
        e, hh, cm, t0 = vT + 4, vT + 5, vT + 6, vT + 7
        TA = 84
        P(f'''v_and_b32 {v(e)}, 31, {v(vLane)}
              v_lshrrev_b32 {v(hh)}, 5, {v(vLane)}
              v_subrev_u32 {v(cm)}, 8, {v(e)}
              v_min_u32 {v(cm)}, 12, {v(cm)}
              v_cmp_gt_u32 vcc, 16, {v(e)}
              v_add_u32 {v(t0)}, 128, {v(cm)}
              v_cndmask_b32 {v(TA)}, {v(t0)}, {v(e)}, vcc
              v_add_u32 {v(t0)}, 120, {v(cm)}
              v_add_u32 {v(TA+1)}, 64, {v(e)}
              v_cndmask_b32 {v(TA+1)}, {v(t0)}, {v(TA+1)}, vcc
              v_lshl_add_u32 {v(TA)}, {v(hh)}, 5, {v(TA)}
              v_lshl_add_u32 {v(TA+1)}, {v(hh)}, 5, {v(TA+1)}
              v_add_u32 {v(t0)}, 32, {v(cm)}
              v_cndmask_b32 {v(TA+2)}, {v(t0)}, {v(e)}, vcc
              v_add_u32 {v(TA+3)}, 16, {v(e)}
              v_cndmask_b32 {v(TA+3)}, {v(t0)}, {v(TA+3)}, vcc
              s_mov_b32 {s(T0)}, {KVT}
              s_mov_b32 {s(T0+1)}, {KVT + 192*8}
              v_lshl_add_u32 {v(TA)}, {v(TA)}, 3, {s(T0)}
              v_lshl_add_u32 {v(TA+1)}, {v(TA+1)}, 3, {s(T0)}
              v_lshl_add_u32 {v(TA+2)}, {v(TA+2)}, 3, {s(T0+1)}
              v_lshl_add_u32 {v(TA+3)}, {v(TA+3)}, 3, {s(T0+1)}
              s_lshl_b32 {s(T0+1)}, {s(s_w)}, 9
              s_add_u32 {s(T0)}, {s(T0)}, {s(T0+1)}
              v_lshl_add_u32 {v(TA+4)}, {v(vLane)}, 3, {s(T0)}''')
        KA = 96
        P([f'v_mov_b32 {v(KA+8*hl+6+i)}, 0' for hl in range(2) for i in range(2)])
        G = 160
        l = P.label('poll')
        P.settle()
        P(f'{l}:')
        for i in range(16):
            if i: P(f's_add_u32 {s(T0)}, {s(s_kvr)}, {4096*i}')
            P(f'buffer_load_dwordx4 {v(G+4*i,4)}, {v(vKVP)}, {SRD(sWS)}, {s(T0) if i else s(s_kvr)} offen sc1')
        spin_pre()
        for i in range(2, 16):
            b = G + 4 * (i % 2)
            P([f'v_add_f32 {v(b+j)}, {v(b+j)}, {v(G+4*i+j)}' for j in range(4)])
        P([f'v_add_f32 {v(G+j)}, {v(G+j)}, {v(G+4+j)}' for j in range(4)])
        P(f'v_cmp_u_f32 vcc, {v(G)}, {v(G+1)}')
        P(f'v_cmp_u_f32 {s(T0,2)}, {v(G+2)}, {v(G+3)}')
        P(f's_or_b64 vcc, vcc, {s(T0,2)}')
        spin_post(l)
        stamp('kvgath')
        P(f'v_cvt_pk_bf16_f32 {v(G+4)}, {v(G)}, {v(G+1)}')
        P(f'v_cvt_pk_bf16_f32 {v(G+5)}, {v(G+2)}, {v(G+3)}')
        P(f'ds_write_b64 {v(TA+4)}, {v(G+4,2)}')
        P(f's_add_u32 {s(s_kvr)}, {s(s_kvr)}, {KVP_IT}')
        P(f's_add_u32 {s(s_kvw)}, {s(s_kvw)}, {KVP_IT}')
        P.wait_all()
        P('s_barrier')
        for hl in range(2):
            P(f'ds_read2_b64 {v(KA+8*hl,4)}, {v(TA+hl)} offset1:16')
            P(f'ds_read_b64 {v(KA+8*hl+4,2)}, {v(TA+2+hl)}')
        for hl in range(2):
            O = v(OB + 16 * hl, 16)
            P(f'{M32} {O}, {v(KA+8*hl,4)}, {v(QOP+4*hl,4)}, 0')
            P(f'{M32} {O}, {v(KA+8*hl+4,4)}, {v(QOP+8+4*hl,4)}, {O}')
        o_publish(OB, 1e-6)
        stamp('opub')
        wo_phase(typ, lambda: None)
    else:
        q_, hh, t0, t1 = vT, vT + 1, vT + 2, vT + 3
        P(f'''s_mul_i32 {s(T0)}, {s(s_w)}, 5120
              s_add_u32 {s(T0)}, {s(T0)}, {REC}
              v_add_u32 {v(aK)}, {s(T0)}, {v(vL16)}
              v_add_u32 {v(aL)}, {s(T0)}, {v(vRL)}
              v_add_u32 {v(aL)}, 4096, {v(aL)}
              v_and_b32 {v(q_)}, 31, {v(vLane)}
              v_lshrrev_b32 {v(hh)}, 5, {v(vLane)}
              v_bfe_u32 {v(t0)}, {v(vLane)}, 2, 2
              v_lshl_add_u32 {v(t0)}, {v(hh)}, 2, {v(t0)}
              v_lshlrev_b32 {v(t0)}, 4, {v(t0)}
              v_bfe_u32 {v(t1)}, {v(vLane)}, 1, 1
              v_mul_u32_u24 {v(t1)}, {512+64}, {v(t1)}
              v_xor_b32 {v(aV)}, {v(t0)}, {v(t1)}
              v_and_b32 {v(t1)}, 1, {v(vLane)}
              v_lshl_add_u32 {v(aV)}, {v(t1)}, 3, {v(aV)}
              v_add_u32 {v(aV+1)}, 3072, {v(aV)}
              v_add_u32 {v(aV)}, 2048, {v(aV)}
              v_and_b32 {v(t1)}, 3, {v(vLane)}
              v_min_u32 {v(t1)}, 1, {v(t1)}
              v_lshl_add_u32 {v(t0)}, {v(t1)}, 3, {v(t0)}
              v_add_u32 {v(t0)}, {4096+128}, {v(t0)}
              s_mov_b32 vcc_lo, 0xffff0000
              s_mov_b32 vcc_hi, 0xffff0000
              v_cndmask_b32 {v(aV)}, {v(aV)}, {v(t0)}, vcc
              v_cndmask_b32 {v(aV+1)}, {v(aV+1)}, {v(t0)}, vcc
              v_add_u32 {v(aV)}, {s(T0)}, {v(aV)}
              v_add_u32 {v(aV+1)}, {s(T0)}, {v(aV+1)}
              v_lshlrev_b32 {v(hh)}, 2, {v(hh)}
              v_sub_u32 {v(q_)}, {v(q_)}, {v(hh)}
              v_mov_b32 {v(t0)}, {H(f2u(-1e30))}''')
        for r_ in range(16):
            key = (r_ & 3) + 8 * (r_ >> 2)
            sg = s(T0 + 2 * (r_ % 4), 2)
            P(f'v_cmp_le_i32 {sg}, {key}, {v(q_)}')
            if r_ % 4 == 3:
                for k in range(r_ - 3, r_ + 1):
                    sg = s(T0 + 2 * (k % 4), 2)
                    P(f'v_cndmask_b32 {v(MK+k)}, {v(t0)}, 0, {sg}')
                    P(f'v_cndmask_b32 {v(MK+16+k)}, 0, {v(t0)}, {sg}')
        P.settle()
        P('L_rerun:')
        attn_seq([8], True)
        stamp('diag')
        def halo():
            G = SB
            va = vT
            P(f'''s_sub_u32 {s(T0)}, {s(s_hw)}, {8*5120}
                  s_add_u32 {s(T0+1)}, {s(T0)}, 4096
                  s_add_u32 {s(T0+2)}, {s(T0)}, {4*5120}
                  s_add_u32 {s(T0+3)}, {s(T0)}, {4*5120+4096}
                  s_cmp_lt_u32 {s(s_r)}, 2
                  s_cselect_b32 {s(T0+4)}, {OOB}, 0
                  s_cmp_lt_u32 {s(s_r)}, 1
                  s_cselect_b32 {s(T0+5)}, {OOB}, 0
                  v_add_u32 {v(va)}, {s(T0+4)}, {v(vL16)}
                  v_add_u32 {v(va+1)}, {s(T0+5)}, {v(vL16)}''')
            l = P.label('poll')
            P.settle()
            P(f'{l}:')
            for b in (1, 0):
                for i in range(5):
                    so = s(T0 + 2 * b + (i == 4))
                    P(f'buffer_load_dwordx4 {v(G+20*b+4*i,4)}, {v(va+b)}, {SRD(sWS)}, {so} offen offset:{1024*(i%4)} sc1')
            spin_pre()
            order = list(range(20, 40)) + list(range(20))
            m = vT + 2
            P(f'v_max_u32 {v(m)}, {v(G+order[0])}, {v(G+order[1])}')
            for i in range(2, 40, 2): P(f'v_max3_u32 {v(m)}, {v(m)}, {v(G+order[i])}, {v(G+order[i+1])}')
            P(f'v_cmp_eq_u32 vcc, -1, {v(m)}')
            spin_post(l)
            for b in range(2):
                for i in range(5): P(f'ds_write_b128 {v(aK)}, {v(G+20*b+4*i,4)} offset:{4*5120*b + 1024*i}')
            P(f's_add_u32 {s(s_hw)}, {s(s_hw)}, {HALO_IT}')
            P.wait_all()
            P('s_barrier')
            def pois():
                P([f'v_mov_b32 {v(vT+4+i)}, -1' for i in range(4)])
                halo_poison(s_hw, vT + 4)
            skip_if(f's_cmp_lg_u32 {s(s_it)}, 0', pois)
        skip_if(f's_cmp_lg_u32 {s(s_rerun)}, 0', halo)
        stamp('halo')
        attn_seq([7, 6, 5, 4, 3, 2, 1, 0], False)
        lo, hi = f2u(2.0 ** -90), f2u(2.0 ** 90)
        if FORCE_FB: lo = hi
        P(f'''v_min_u32 {v(vT)}, {v(OB+12)}, {v(OB+28)}
              v_max_u32 {v(vT+1)}, {v(OB+12)}, {v(OB+28)}
              v_cmp_gt_u32 vcc, {H(lo)}, {v(vT)}
              s_mov_b64 {s(T0,2)}, vcc
              v_cmp_lt_u32 vcc, {H(hi)}, {v(vT+1)}
              s_or_b64 vcc, vcc, {s(T0,2)}
              s_cbranch_scc1 L_fallback''')
        P('L_attn_done:')
        P(f's_mov_b32 {s(s_rerun)}, 0')
        stamp('attn')
        o_publish(OB, 0)
        P('s_barrier')
        stamp('opub')
        wo_phase(typ, lambda: skip_if(f's_cmp_lg_u32 {s(s_it)}, 0', lambda: P(dma_p1(nxt))))

def fallback():
    P('L_fallback:')
    P(f's_cmp_lg_u32 {s(s_rerun)}, 0')
    P('s_cbranch_scc1 L_attn_done')
    P(f's_mov_b32 {s(s_rerun)}, 1')
    m = vT
    P([f'v_mov_b32 {v(m+hl)}, {H(f2u(-3e38))}' for hl in range(2)])
    P(f'''s_lshl_b32 {s(T0)}, {s(s_r)}, 2
          s_add_u32 {s(T0)}, {s(T0)}, {s(s_w)}
          s_sub_i32 {s(T0)}, 8, {s(T0)}''')
    for j in range(8, -1, -1):
        if j < 8:
            P.settle()
            P(f's_cmp_gt_i32 {s(T0)}, {j}')
            P('s_cbranch_scc1 L_fb_fold')
        P(f'ds_read_b128 {v(LB,4)}, {v(aL)} offset:{5120*j}')
        for hl in range(2):
            S = SB + 16 * hl
            c0 = v(MK, 16) if j == 8 else (v(MK + 16, 16) if j == 0 else '0')
            P(f'ds_read_b128 {v(KB+4*hl,4)}, {v(aK)} offset:{5120*j + 1024*hl}')
            P(f'{M32} {v(S,16)}, {v(KB+4*hl,4)}, {v(QOP+4*hl,4)}, {c0}')
            P(f'{M32} {v(S,16)}, {v(LB,4)}, {v(QOP+8+4*hl,4)}, {v(S,16)}')
        for hl in range(2):
            S = SB + 16 * hl
            for i in range(0, 16, 2): P(f'v_max3_f32 {v(m+hl)}, {v(m+hl)}, {v(S+i)}, {v(S+i+1)}')
    P.settle()
    P('L_fb_fold:')
    for hl in range(2):
        x, y, z, u = vT + 2, vT + 3, vT + 4, vT + 5
        P(f'''v_mov_b32 {v(x)}, {v(m+hl)}
              v_permlane32_swap_b32 {v(m+hl)}, {v(x)}
              v_max_f32 {v(x)}, {v(m+hl)}, {v(x)}
              v_sub_f32 {v(x)}, 0, {v(x)}
              v_and_b32 {v(y)}, 0xffff0000, {v(x)}
              v_sub_f32 {v(x)}, {v(x)}, {v(y)}
              v_and_b32 {v(z)}, 0xffff0000, {v(x)}
              v_sub_f32 {v(x)}, {v(x)}, {v(z)}
              v_lshrrev_b32 {v(y)}, 16, {v(y)}
              v_or_b32 {v(y)}, {v(y)}, {v(z)}
              v_lshrrev_b32 {v(x)}, 16, {v(x)}
              v_cndmask_b32 {v(QOP+8+4*hl+2)}, 0, {v(y)}, {s(s_mlo,2)}
              v_cndmask_b32 {v(QOP+8+4*hl+3)}, 0, {v(x)}, {s(s_mlo,2)}''')
    P.settle()
    P('s_branch L_rerun')

def final_out():
    PK = 64
    pack_x(PK)
    t = vT
    P(f'''s_mul_i32 {s(T0+7)}, {s(s_w)}, 2304
          s_add_u32 {s(T0+7)}, {s(T0+7)}, {RR}
          v_and_b32 {v(t)}, 15, {v(vLane)}
          v_mul_u32_u24 {v(t)}, 144, {v(t)}
          v_lshrrev_b32 {v(t+1)}, 4, {v(vLane)}
          v_lshl_add_u32 {v(t)}, {v(t+1)}, 3, {v(t)}
          v_add_u32 {v(t)}, {s(T0+7)}, {v(t)}
          v_add_u32 {v(t+1)}, {s(T0+7)}, {v(vL16)}
          s_add_u32 {s(T0)}, {s(s_xrow)}, {7*1152}
          s_add_u32 {s(T0+1)}, {s(s_xrow)}, {14*1152}''')
    for t_ in range(4): P(f'ds_write_b64 {v(t)}, {v(PK+2*t_,2)} offset:{32*t_}')
    P('s_mov_b32 exec_hi, 0')
    P(f'ds_write_b64 {v(t)}, {v(PK+8,2)} offset:128')
    P('s_mov_b32 exec_hi, 0x7fffffff')
    for m in range(3): P(f'ds_read_b128 {v(80+4*m,4)}, {v(t+1)} offset:{1008*m}')
    P(f'buffer_store_dwordx4 {v(80,4)}, {v(vXO)}, {SRD(sOUT)}, {s(s_xrow)} offen')
    P(f'buffer_store_dwordx4 {v(84,4)}, {v(vXO)}, {SRD(sOUT)}, {s(T0)} offen')
    P('s_mov_b64 exec, 0x3ffff')
    P(f'buffer_store_dwordx4 {v(88,4)}, {v(vXO)}, {SRD(sOUT)}, {s(T0+1)} offen')
    P('s_mov_b64 exec, -1')

def main():
    prologue()
    P.settle(); P.no_pending_regs()
    P('L_loop:')
    base = nstamp[0]
    layer('A')
    publish_x(64)
    stamp('xpub')
    P(dma_p2('B')); P(dma_q('B'))
    layer('B')
    P(f's_cmp_lg_u32 {s(s_it)}, 0')
    P('s_cbranch_scc1 L_final')
    sn = P.snap()
    publish_x(64)
    stamp('xpub')
    P(dma_p2('A')); P(dma_q('A'))
    P(f's_mov_b32 {s(s_it)}, 1')
    P.settle(); P.no_pending_regs()
    P('s_branch L_loop')
    P.restore(sn)
    P('L_final:')
    final_out()
    if DIAG:
        P('s_waitcnt vmcnt(0)')
        nstamp[0] -= 1; STN.pop()
        stamp('end')
        P(f'''s_lshl_b32 {s(T0)}, s2, 2
              s_add_u32 {s(T0)}, {s(T0)}, {s(s_w)}
              s_lshl_b32 {s(T0)}, {s(T0)}, 8
              s_add_u32 {s(T0)}, {s(T0)}, {STAMP}
              v_lshlrev_b32 {v(vT)}, 2, {v(vLane)}''')
        P(f'buffer_store_dword {v(vStamp)}, {v(vT)}, {SRD(sWS)}, {s(T0)} offen')
        assert nstamp[0] - base <= 28 and nstamp[0] + 28 <= 64, nstamp
    P('L_end:')
    P('s_endpgm')
    P.hist = []; P.vm = []; P.lg = []
    fallback()
    P.out += OUTL
    head = open('cdna_kernels/' + NAME + '.s.ref').read().split('; Override launch')[0]
    txt = head + f'''; Persistent kernel: 256 workgroups (one per CU), generated by a hand-written script.
; @launch grid=(256,1,1) block=(256,1,1) lds=163840
.amdgcn_target "amdgcn-amd-amdhsa--gfx950"
.text
.globl {NAME}_kernel
.p2align 8
.type {NAME}_kernel,@function
{NAME}_kernel:
''' + P.text() + f'''.section .rodata,"a"
.p2align 6
.amdhsa_kernel {NAME}_kernel
  .amdhsa_next_free_vgpr 512
  .amdhsa_next_free_sgpr 102
  .amdhsa_accum_offset 256
  .amdhsa_group_segment_fixed_size 0
  .amdhsa_kernarg_size 72
  .amdhsa_user_sgpr_count 2
  .amdhsa_user_sgpr_kernarg_segment_ptr 1
  .amdhsa_system_sgpr_workgroup_id_x 1
.end_amdhsa_kernel
'''
    out = [x for x in sys.argv[1:] if not x.startswith('--')]
    path = out[0] if out else 'cdna_kernels/' + NAME + '.s'
    import subprocess, re as _re
    open('_probe.s', 'w').write(txt.replace('CODE_LAST', '0x1234'))
    subprocess.run(['clang', '-x', 'assembler', '-target', 'amdgcn-amd-amdhsa', '-mcpu=gfx950', '-c', '_probe.s', '-o', '_probe.o'], check=True)
    sec = subprocess.run(['llvm-readelf', '-S', '_probe.o'], capture_output=True, text=True).stdout
    size = int(_re.search(r'\.text\s+PROGBITS\s+\S+\s+\S+\s+(\S+)', sec).group(1), 16)
    txt = txt.replace('CODE_LAST', hex((size - 256) & ~3))
    print('code size', size)
    open(path, 'w').write(txt)
    if DIAG: open(path + '.stamps', 'w').write(f'{base}\n' + '\n'.join(STN))
    print('wrote', path, 'lines', len(P.out), 'nop states', P.nnop)

main()
```
